```python
import torch

def _softmax(x, axis=-1):
    return torch.softmax(x, dim=axis)
def _gelu(x):
    return torch.nn.functional.gelu(x, approximate="tanh")
def _silu(x):
    return torch.nn.functional.silu(x)
def _sigmoid(x):
    return torch.sigmoid(x)
def _layernorm(x, axis=-1, eps=1e-5):
    m = x.mean(dim=axis, keepdim=True)
    v = x.var(dim=axis, keepdim=True, unbiased=False)
    return (x - m) / torch.sqrt(v + eps)
def _scatter_add(tgt, idx, src, axis=0):
    return tgt.clone().index_add_(axis, idx, src)
def _segment_sum(src, seg, n):
    out = torch.zeros((n,) + src.shape[1:], dtype=src.dtype)
    return out.index_add_(0, seg, src)
def _pad(x, pw):
    flat = tuple(v for pair in reversed(pw) for v in pair)
    return torch.nn.functional.pad(x, flat)

kernel_name = 'recurrent_scan__softmax_full_mha__glu_gated_swiglu__prompt'

def setup_inputs():

    _w = (lambda a: (lambda t: t.to(torch.bfloat16) if t.is_floating_point() else t)(torch.as_tensor(a)))
    def _A_setup():
        B, S, D = 1, 2048, 512
        return {
            "x": _w((lambda *s: torch.randn(*s, dtype=torch.bfloat16) * 0.05)(B, S, D)),
            "wqkv": _w((lambda *s: torch.randn(*s, dtype=torch.bfloat16) * 0.2)(D, 3 * D)),
            "wo": _w((lambda *s: torch.randn(*s, dtype=torch.bfloat16) * 0.2)(D, D)),
        }
    _A_in = _A_setup()

    def _B_setup():
        B, S, D, F = 1, 2048, 512, 1792
        return {
            "x": _w((lambda *s: torch.randn(*s, dtype=torch.bfloat16) * 0.05)(B, S, D)),
            "w1": _w((lambda *s: torch.randn(*s, dtype=torch.bfloat16) * 0.1)(D, F) * (2.0 / D) ** 0.5),
            "w3": _w((lambda *s: torch.randn(*s, dtype=torch.bfloat16) * 0.1)(D, F) * (2.0 / D) ** 0.5),
            "w2": _w((lambda *s: torch.randn(*s, dtype=torch.bfloat16) * 0.1)(F, D) * (2.0 / F) ** 0.5),
        }
    _B_in = _B_setup()

    return {
        "A_x": _A_in["x"],
        "A_wqkv": _A_in["wqkv"],
        "A_wo": _A_in["wo"],
        "B_x": _B_in["x"],
        "B_w1": _B_in["w1"],
        "B_w3": _B_in["w3"],
        "B_w2": _B_in["w2"],
    }

def reference(A_x, A_wqkv, A_wo, B_x, B_w1, B_w3, B_w2):
    def _A_ref(x, wqkv, wo):
        B, S, D = x.shape
        H = 32; Dh = D // H
        qkv = (lambda x, *d: x.permute(*d))((x @ wqkv).reshape(B, S, 3, H, Dh), 2, 0, 3, 1, 4)
        q, k, v = qkv[0], qkv[1], qkv[2]
        scale = Dh ** -0.5
        scores = torch.einsum("bhqd,bhkd->bhqk", q, k) * scale
        p = _softmax(scores, axis=-1)
        o = torch.einsum("bhqk,bhkd->bhqd", p, v)
        return (lambda x, *d: x.permute(*d))(o, 0, 2, 1, 3).reshape(B, S, D) @ wo

    def _B_ref(x, w1, w3, w2):
        gate = torch.einsum("bsd,df->bsf", x, w1)
        up = torch.einsum("bsd,df->bsf", x, w3)
        h = _silu(gate) * up
        out = torch.einsum("bsf,fd->bsd", h, w2)
        return out

    x = A_x
    xn = _layernorm(x, axis=-1)
    s = _A_ref(xn, A_wqkv, A_wo)
    g = _silu(_B_ref(xn, B_w1, B_w3, B_w2))
    return x + s * g
```

```python
import re

TRANS = ("v_exp_f32", "v_log_f32", "v_rcp_f32", "v_rsq_f32", "v_sqrt_f32", "v_sin_f32", "v_cos_f32")


def regs_of(op):
    op = op.strip()
    op = op.lstrip("-")
    if op.startswith("abs(") and op.endswith(")"):
        op = op[4:-1]
    if op.startswith("|") and op.endswith("|"):
        op = op[1:-1]
    m = re.fullmatch(r"([vsa])(\d+)", op)
    if m:
        return {op}
    m = re.fullmatch(r"([vsa])\[(\d+):(\d+)\]", op)
    if m:
        return {f"{m.group(1)}{i}" for i in range(int(m.group(2)), int(m.group(3)) + 1)}
    if op in ("vcc", "exec", "m0"):
        return {op}
    if op in ("vcc_lo", "vcc_hi"):
        return {"vcc"}
    if op in ("exec_lo", "exec_hi"):
        return {"exec"}
    return set()


class Ins:
    def __init__(self, text):
        self.text = text
        t = text.split(";")[0].strip()
        self.label = t.endswith(":")
        self.directive = t.startswith(".")
        self.mn = t.split()[0] if t else ""
        rest = t[len(self.mn):].strip()
        ops = [o.strip() for o in re.split(r",(?![^\[]*\])", rest)] if rest else []
        self.mods = ""
        if ops:
            parts = ops[-1].split()
            ops[-1] = parts[0] if parts else ""
            self.mods = " ".join(parts[1:])
        self.ops = ops
        mn = self.mn
        self.w = set()
        self.r = set()
        self.kind = "other"
        self.A = self.B = self.C = set()
        self.data = set()
        if self.label or self.directive or not mn:
            self.kind = "none"
        elif mn.startswith("v_mfma"):
            self.kind = "mfma"
            self.w = regs_of(ops[0])
            self.A, self.B, self.C = regs_of(ops[1]), regs_of(ops[2]), regs_of(ops[3])
            self.r = self.A | self.B | self.C
            self.passes = 8 if "32x32x16" in mn else 4
        elif mn.startswith("v_"):
            self.kind = "valu"
            self.w = regs_of(ops[0])
            for o in ops[1:]:
                self.r |= regs_of(o)
            if mn.startswith(("v_fmac", "v_dot2c", "v_mac")) or "UNUSED_PRESERVE" in self.mods:
                self.r |= self.w
            if mn.startswith("v_permlane") and "swap" in mn:
                self.w = regs_of(ops[0]) | regs_of(ops[1])
                self.r = set(self.w)
            if mn.startswith("v_cndmask") and len(ops) == 3:
                self.r |= {"vcc"}
            if mn.startswith(("v_add_co", "v_sub_co", "v_addc_co")):
                self.w |= regs_of(ops[1])
        elif mn.startswith("ds_read") or mn.startswith("ds_bpermute"):
            self.kind = "ds"
            self.w = regs_of(ops[0])
            for o in ops[1:]:
                self.r |= regs_of(o)
        elif mn.startswith("ds_"):
            self.kind = "ds"
            for o in ops:
                self.r |= regs_of(o)
        elif mn.startswith("buffer_") or mn.startswith("global_"):
            self.kind = "vmem"
            if "lds" in self.mods.split() or "load_lds" in mn:
                for o in ops:
                    self.r |= regs_of(o)
                self.r |= {"m0"}
                self.dma = True
            elif "load" in mn:
                self.w = regs_of(ops[0])
                for o in ops[1:]:
                    self.r |= regs_of(o)
            else:
                for o in ops:
                    self.r |= regs_of(o)
                if mn.startswith("buffer_"):
                    self.data = regs_of(ops[0])
                else:
                    self.data = regs_of(ops[1])
        elif mn.startswith("s_"):
            self.kind = "salu"
            if mn.startswith(("s_cmp", "s_bitcmp", "s_cbranch", "s_branch", "s_waitcnt", "s_barrier", "s_nop",
                              "s_setprio", "s_sleep", "s_endpgm")):
                for o in ops:
                    self.r |= regs_of(o)
            else:
                self.w = regs_of(ops[0]) if ops else set()
                for o in ops[1:]:
                    self.r |= regs_of(o)
        self.states = 0 if self.kind == "none" else 1
        if mn == "s_nop":
            self.states = int(ops[0], 0) + 1

    @property
    def trans(self):
        return self.mn.startswith(TRANS)

    @property
    def dot(self):
        return self.mn.startswith("v_dot")


def vregs(s):
    return {x for x in s if x[0] in "va" and x != "vcc"}


def sregs(s):
    return {x for x in s if x[0] == "s" or x == "vcc"}


def need(p, c):
    n = 0
    if p.kind == "valu":
        pw = vregs(p.w)
        if c.kind == "mfma" and pw & c.r:
            n = max(n, 2)
        if c.kind == "valu":
            if c.mn.startswith("v_permlane") and pw & c.r:
                n = max(n, 2)
            if c.mn.startswith(("v_readlane", "v_readfirstlane")) and pw & c.r:
                n = max(n, 1)
            if ("dpp" in c.mn or "quad_perm" in c.mods or "row_" in c.mods) and pw & c.r:
                n = max(n, 2)
            if p.trans and not c.trans and pw & (c.r | c.w):
                n = max(n, 1)
            if "sdwa" in p.mn and pw & (c.r | c.w):
                n = max(n, 1)
            if sregs(p.w) & c.r:
                n = max(n, 2)
        if p.dot and pw & (c.r | c.w):
            if c.mn == p.mn and c.kind == "valu" and pw == regs_of(c.ops[-1]) and not (pw & (regs_of(c.ops[1]) | regs_of(c.ops[2]))):
                pass
            else:
                n = max(n, 3)
        if p.trans and c.kind in ("ds", "vmem", "mfma") and pw & c.r:
            n = max(n, 2)
        if c.kind == "vmem" and sregs(p.w) & c.r:
            n = max(n, 5)
        if c.kind == "salu" and sregs(p.w) & c.r:
            n = max(n, 1)
        if c.mn.startswith("s_cbranch_vcc") and "vcc" in p.w:
            n = max(n, 1)
        if "exec" in p.w and c.kind == "mfma":
            n = max(n, 4)
    if p.kind == "mfma":
        big = {8: 12, 4: 8}[p.passes]
        ovl = {8: 10, 4: 6}[p.passes]
        war = {8: 7, 4: 3}[p.passes]
        if c.kind == "mfma":
            if p.w & (c.A | c.B):
                n = max(n, big)
            if p.w & c.C and not (p.w == c.C and p.passes == c.passes):
                n = max(n, ovl)
            if p.w & c.w and not (p.w == c.C) and not (p.w & c.C):
                n = max(n, ovl)
        elif c.kind in ("valu", "ds", "vmem"):
            if p.w & (c.r | c.w):
                n = max(n, big)
            if c.kind == "valu" and p.C & c.w:
                n = max(n, war)
    if p.kind == "salu" and "m0" in p.w and c.kind == "vmem" and "m0" in c.r:
        n = max(n, 1)
    if p.kind == "vmem" and len(p.data) >= 3 and (p.data & c.w):
        n = max(n, 2)
    return n


def pad(seq, window=24):
    out = []
    for ins in seq:
        if ins.kind != "none":
            dist = 0
            req = 0
            for p in reversed(out):
                if dist >= window:
                    break
                if p.kind != "none":
                    k = need(p, ins) - dist
                    if k > req:
                        req = k
                dist += p.states
            if req > 0:
                out.append(Ins(f"s_nop {req - 1}"))
        out.append(ins)
    return out


def check(seq, window=24, what=""):
    bad = []
    for i, ins in enumerate(seq):
        if ins.kind == "none":
            continue
        dist = 0
        for p in reversed(seq[:i][-window - 8:]):
            if dist >= window:
                break
            if p.kind != "none" and need(p, ins) > dist:
                bad.append((p.text, ins.text, need(p, ins), dist))
            dist += p.states
    assert not bad, (what, bad[:5])


class Emit:
    def __init__(self):
        self.seq = []

    def __call__(self, text):
        for line in text.split("\n"):
            line = line.strip()
            if line:
                self.seq.append(Ins(line))

    def extend(self, other):
        self.seq.extend(other.seq if isinstance(other, Emit) else other)

    def text(self):
        out = []
        for i in self.seq:
            out.append(i.text if (i.label or i.directive) else "    " + i.text)
        return "\n".join(out)


def vr(a, n):
    return f"v[{a}:{a + n - 1}]" if n > 1 else f"v{a}"


def sr(a, n):
    return f"s[{a}:{a + n - 1}]" if n > 1 else f"s{a}"
```

```python
import sys
from asmlib import Emit, Ins, pad, check, vr, sr

NAME = "recurrent_scan__softmax_full_mha__glu_gated_swiglu__prompt"

class Opt:
    stamps = False
    prioA_H = 2
    prioB_H = 1
    prioB_C = 0
    force_fallback = False
    codepf = True
    wpf = True


KVOFF = 0
QOFF = 4 << 20
OOFF = 6 << 20
HOFF = 8 << 20
FQ = 16 << 20
FH = FQ + 4096
FO = FQ + 8192
STAMPS = 18 << 20
WS_BYTES = 20 << 20

LDS_BYTES = 163840
SLOT = 8704
NSLOT = 7
RING = LDS_BYTES - NSLOT * SLOT
KVP = 2064
RB = 64 * KVP
RBW = 6144


def slot_addr(s):
    return RING + ((s + 4) % NSLOT) * SLOT


sWAVE = 3
sX, sWQKV, sWO, sW1, sW3, sW2, sOUT, sDBG, sWS = 4, 6, 8, 12, 14, 16, 18, 20, 22
rWS, rA, rB, rC, rD, rE = 24, 28, 32, 36, 40, 44
sXCD, sIDX, sRBK, sGAM, sSET, sW, sHD, sQB, sJ = 48, 49, 50, 51, 52, 53, 54, 55, 56
sT0 = 57
sST = 80

LOG2E = 1.4426950408889634


def f2u(x):
    import struct
    return struct.unpack("<I", struct.pack("<f", x))[0]


def srd(e, r, base, nbytes):
    e(f"s_mov_b32 s{r}, s{base}")
    e(f"s_mov_b32 s{r+1}, s{base+1}")
    e(f"s_mov_b32 s{r+2}, {nbytes}")
    e(f"s_mov_b32 s{r+3}, 0x00020000")


class Stamper:
    def __init__(self, on):
        self.on = on
        self.n = 0

    def __call__(self, e, k):
        if self.on:
            e(f"s_memtime s[{sST+2*k}:{sST+2*k+1}]")
            e("s_waitcnt lgkmcnt(0)")

    def flush(self, e, nst, vt=2):
        if not self.on:
            return
        e(f"s_memrealtime s[{sST+18}:{sST+19}]")
        e("s_waitcnt lgkmcnt(0)")
        e(f"s_lshl_b32 s{sT0}, s2, 3")
        e(f"s_add_u32 s{sT0}, s{sT0}, s{sWAVE}")
        e(f"s_lshl_b32 s{sT0}, s{sT0}, 6")
        e(f"s_add_u32 s{sT0}, s{sT0}, {STAMPS}")
        e(f"v_mov_b32 v{vt+1}, 0")
        for k in list(range(nst)) + [9]:
            e(f"v_mov_b32 v{vt}, s{sST+2*k}")
            e(f"buffer_store_dword v{vt}, v{vt+1}, s[{rWS}:{rWS+3}], s{sT0} offen offset:{4*k}")
            e("s_waitcnt vmcnt(0)")


def prologue(e, o, st):
    e("s_cmp_ge_u32 s2, 256")
    e("s_cbranch_scc1 L_exit")
    e("s_load_dwordx16 s[4:19], s[0:1], 0")
    e("s_load_dwordx4 s[20:23], s[0:1], 64")
    if o.stamps:
        e(f"s_memtime s[{sST}:{sST+1}]")
    e("v_lshrrev_b32 v1, 6, v0")
    e("v_and_b32 v0, 63, v0")
    e(f"v_readfirstlane_b32 s{sWAVE}, v1")
    e(f"s_and_b32 s{sXCD}, s2, 7")
    e(f"s_lshr_b32 s{sIDX}, s2, 3")
    e(f"s_and_b32 s{sQB}, s{sIDX}, 7")
    e(f"s_lshr_b32 s{sW}, s{sIDX}, 3")
    e(f"s_lshl_b32 s{sHD}, s{sXCD}, 2")
    e(f"s_add_u32 s{sHD}, s{sHD}, s{sW}")
    e(f"s_lshr_b32 s{sSET}, s{sXCD}, 1")
    e(f"s_lshl_b32 s{sGAM}, s{sSET}, 2")
    e(f"s_add_u32 s{sGAM}, s{sGAM}, s{sW}")
    e(f"s_and_b32 s{sRBK}, s{sXCD}, 1")
    e(f"s_lshl_b32 s{sRBK}, s{sRBK}, 3")
    e(f"s_add_u32 s{sRBK}, s{sRBK}, s{sQB}")
    e(f"s_and_b32 s{sJ}, s{sWAVE}, 3")
    e("v_lshlrev_b32 v1, 4, v0")
    e("s_waitcnt lgkmcnt(0)")
    srd(e, rWS, sWS, WS_BYTES)
    e(f"s_cmp_ge_u32 s{sWAVE}, 4")
    e("s_cbranch_scc1 L_helper")


vL, vL16, vKV, vWA4, vWA2, vRS, vNB = 0, 1, 2, 3, 4, 5, 6
vT = 7
vFR = 12
NFR = 5
B0, B1, B2 = 32, 64, 96
X = 128
O0, O1, VB, P0, P1, KB, Q0, Q1, S0, S1, C0, C1 = 128, 144, 160, 176, 184, 192, 200, 204, 208, 224, 240, 96
vK, vVA, vVB = 7, 8, 9
sRT, sMASK, sNL2E, sH1, sH3, sKV00, sKV01, sKV10, sKV11, sQS, sIT, sONE, sQ0, sQ1 = range(sT0 + 1, sT0 + 15)


def c_prologue(e, o, st):
    e(f"s_lshl_b32 s{sRT}, s{sRBK}, 2")
    e(f"s_add_u32 s{sRT}, s{sRT}, s{sJ}")
    srd(e, rA, sX, 2097152)
    a = B2
    vx = [a, a + 1, a + 2, a + 3]
    xa = [a + 4, a + 5, a + 6, a + 7]
    t0, t1, t2 = a + 8, a + 9, a + 10
    e(f"v_lshrrev_b32 v{t0}, 3, v{vL}")
    e(f"v_lshlrev_b32 v{t0}, 10, v{t0}")
    e(f"v_lshrrev_b32 v{t1}, 4, v{vL}")
    e(f"v_and_b32 v{t2}, 7, v{vL}")
    e(f"v_xor_b32 v{t2}, v{t1}, v{t2}")
    e(f"v_lshl_add_u32 v{vx[0]}, v{t2}, 4, v{t0}")
    e(f"v_xor_b32 v{vx[1]}, 64, v{vx[0]}")
    e(f"v_add_u32 v{vx[1]}, 8192, v{vx[1]}")
    e(f"v_add_u32 v{vx[2]}, 16384, v{vx[0]}")
    e(f"v_add_u32 v{vx[3]}, 16384, v{vx[1]}")
    e(f"s_lshl_b32 s{sT0}, s{sRT}, 15")
    e(f"s_lshl_b32 s{sQS}, s{sJ}, 15")
    for seg in range(8):
        for rg in range(4):
            e(f"s_add_u32 m0, s{sQS}, {(seg*4+rg)*1024 - seg*128}")
            e(f"buffer_load_dwordx4 v{vx[rg]}, s[{rA}:{rA+3}], s{sT0} offen offset:{seg*128} lds")
    e(f"v_and_b32 v{t0}, 31, v{vL}")
    e(f"v_lshlrev_b32 v{t1}, 7, v{t0}")
    e(f"v_add_u32 v{t1}, s{sQS}, v{t1}")
    e(f"v_bfe_u32 v{t0}, v{vL}, 1, 3")
    e(f"v_lshrrev_b32 v{t2}, 5, v{vL}")
    e(f"v_xor_b32 v{t0}, v{t0}, v{t2}")
    for k in range(4):
        e(f"v_xor_b32 v{xa[k]}, {2*k}, v{t0}")
        e(f"v_lshl_add_u32 v{xa[k]}, v{xa[k]}, 4, v{t1}")
    e(f"v_bfe_u32 v{t0}, v{vL}, 2, 2")
    e(f"v_and_b32 v{t1}, 3, v{vL}")
    e(f"v_lshlrev_b32 v{t1}, 3, v{t1}")
    e(f"v_lshl_add_u32 v{t1}, v{t2}, 8, v{t1}")
    e(f"v_add_u32 v{t1}, {RING}, v{t1}")
    e(f"v_bfe_u32 v{t2}, v{vL}, 4, 1")
    e(f"v_mul_u32_u24 v{vWA4}, 1056, v{t0}")
    e(f"v_mul_u32_u24 v{vWA2}, 4224, v{t2}")
    e(f"v_add3_u32 v{vWA4}, v{vWA4}, v{vWA2}, v{t1}")
    e(f"v_mul_u32_u24 v{vWA2}, 1088, v{t0}")
    e(f"v_lshl_add_u32 v{vWA2}, v{t2}, 5, v{vWA2}")
    e(f"v_add_u32 v{vWA2}, v{vWA2}, v{t1}")
    e(f"v_lshrrev_b32 v{t0}, 5, v{vL}")
    e(f"v_lshlrev_b32 v{t0}, 8, v{t0}")
    e(f"v_and_b32 v{t1}, 15, v{vL}")
    e(f"v_lshl_add_u32 v{t0}, v{t1}, 4, v{t0}")
    e(f"v_lshl_add_u32 v{t0}, v{t2}, 17, v{t0}")
    e(f"v_add_u32 v{t0}, 1024, v{t0}")
    e(f"s_cmp_lt_u32 s{sW}, 2")
    e("s_cselect_b64 vcc, -1, 0")
    e(f"s_movk_i32 s{sT0}, 512")
    e(f"s_cselect_b32 s{sT0}, 131072, s{sT0}")
    e(f"v_cndmask_b32 v{vKV}, v{t0}, v{vL16}, vcc")
    e(f"s_and_b32 s{sKV00}, s{sW}, 1")
    e(f"s_lshl_b32 s{sKV01}, s{sSET}, 1")
    e(f"s_add_u32 s{sKV00}, s{sKV00}, s{sKV01}")
    e(f"s_lshl_b32 s{sKV00}, s{sKV00}, 8")
    e(f"s_add_u32 s{sKV00}, s{sKV00}, s{sRT}")
    e(f"s_lshl_b32 s{sKV00}, s{sKV00}, 11")
    e(f"s_add_u32 s{sKV01}, s{sKV00}, s{sT0}")
    e(f"s_add_u32 s{sKV10}, s{sKV00}, 262144")
    e(f"s_add_u32 s{sKV11}, s{sKV01}, 262144")
    e(f"s_mul_i32 s{sH3}, s{sSET}, 7")
    e(f"s_lshl_b32 s{sT0}, s{sW}, 1")
    e(f"s_add_u32 s{sH3}, s{sH3}, s{sT0}")
    e(f"s_lshl_b32 s{sH3}, s{sH3}, 2")
    e(f"s_mul_i32 s{sT0}, s{sRT}, 112")
    e(f"s_add_u32 s{sH3}, s{sH3}, s{sT0}")
    e(f"s_lshl_b32 s{sH3}, s{sH3}, 10")
    e(f"s_add_u32 s{sH3}, s{sH3}, {HOFF}")
    e(f"s_sub_u32 s{sH1}, s{sH3}, 4096")
    e(f"s_lshl_b32 s{sQ0}, s{sSET}, 9")
    e(f"s_add_u32 s{sQ0}, s{sQ0}, s{sRT}")
    e(f"s_lshl_b32 s{sQ0}, s{sQ0}, 10")
    e(f"s_add_u32 s{sQ0}, s{sQ0}, {QOFF}")
    e(f"s_mov_b32 s{sMASK}, 0xffff0000")
    e(f"s_mov_b32 s{sNL2E}, {hex(f2u(-LOG2E))}")
    e(f"s_mov_b32 s{sONE}, 0x3f803f80")
    e(f"s_lshl_b32 s{sT0}, s{sGAM}, 6")
    e(f"s_add_u32 s{sT0}, s{sT0}, s{sRT}")
    e(f"s_lshl_b32 s{sT0}, s{sT0}, 2")
    e(f"s_add_u32 s{sT0}, s{sT0}, {FQ}")
    e(f"s_add_u32 s{rB}, s{sWS}, s{sT0}")
    e(f"s_addc_u32 s{rB+1}, s{sWS+1}, 0")
    e(f"s_mov_b32 s{rB+2}, 4")
    e(f"s_mov_b32 s{rB+3}, 0x00020000")
    sa, sb, qa, qb_ = a + 12, a + 13, a + 14, a + 15
    for r in (sa, sb, qa, qb_):
        e(f"v_mov_b32 v{r}, 0")

    def stats(seg):
        for r in range(16):
            x = X + seg * 16 + r
            s_, q_ = (sa, qa) if r % 2 == 0 else (sb, qb_)
            e(f"v_dot2_f32_bf16 v{s_}, v{x}, s{sONE}, v{s_}")
            e(f"v_dot2_f32_bf16 v{q_}, v{x}, v{x}, v{q_}")

    for seg in range(8):
        e(f"s_waitcnt vmcnt({28 - 4*seg})")
        for k in range(4):
            e(f"ds_read_b128 {vr(X + seg*16 + 4*k, 4)}, v{xa[k]} offset:{seg*4096}")
        if seg > 0:
            e("s_waitcnt lgkmcnt(4)")
            stats(seg - 1)
    e("s_waitcnt lgkmcnt(0)")
    st(e, 1)
    e("s_barrier")
    return (sa, sb, qa, qb_, stats)


def tr_reads(u):
    s = u // 8
    base = slot_addr(s) - RING
    fr = vFR + 4 * (u % NFR)
    if 128 <= u < 192:
        k, t = divmod(u - 128, 2)
        off = base + ((k >> 1) & 1) * 4352 + (k & 1) * 512 + t * 64
        a = vWA2
    else:
        k, t = divmod(u if u < 128 else u - 192, 4)
        off = base + (k & 1) * 512 + t * 32
        a = vWA4
    return [f"ds_read_b64_tr_b16 {vr(fr, 2)}, v{a} offset:{off}",
            f"ds_read_b64_tr_b16 {vr(fr + 2, 2)}, v{a} offset:{off + 128}"]


def mfma_u(u, vtype=False):
    fr = vr(vFR + 4 * (u % NFR), 4)
    if 128 <= u < 192:
        k, t = divmod(u - 128, 2)
        acc = B2 + 16 * t
    else:
        k, t = divmod(u if u < 128 else u - 192, 4)
        acc = B0 + 16 * t
    x = vr(X + 4 * k, 4)
    c = "0" if k == 0 else vr(acc, 16)
    a, b = (x, fr) if vtype else (fr, x)
    return f"v_mfma_f32_32x32x16_bf16 {vr(acc, 16)}, {a}, {b}, {c}"


LAST_W_BARRIER = 37


def run_pass(e, u0, u1, fillers, per_slot, start=0, vtype=False, at=None):
    fi = 0
    credit = 0.0
    for u in range(u0, u1):
        if u % 2 == 0:
            left = min(320, u + NFR - 1) - (u + 2)
            e(f"s_waitcnt lgkmcnt({2 * max(left, 0)})")
        e(mfma_u(u, vtype))
        un = u + NFR - 1
        if un < 320:
            if un % 8 == 0 and un // 8 <= LAST_W_BARRIER:
                e("s_barrier")
            for r in tr_reads(un):
                e(r)
        if at and u in at:
            for t in at[u]:
                e(t)
        if u - u0 >= start:
            credit += per_slot
            while fi < len(fillers) and credit >= fillers[fi][0] - 1e-9:
                credit -= fillers[fi][0]
                e(fillers[fi][1])
                fi += 1
    while fi < len(fillers):
        e(fillers[fi][1])
        fi += 1


def ffn_epi(a, soff, imm):
    f = []
    for p in range(4):
        g0, g1, u0, u1 = a + 2 * p, a + 2 * p + 1, a + 8 + 2 * p, a + 9 + 2 * p
        f += [(1, f"v_mul_f32 v{u0}, v{g0}, v{u0}"), (1, f"v_mul_f32 v{u1}, v{g1}, v{u1}"),
              (1, f"v_mul_f32 v{g0}, s{sNL2E}, v{g0}"), (1, f"v_mul_f32 v{g1}, s{sNL2E}, v{g1}"),
              (2, f"v_exp_f32 v{g0}, v{g0}"), (2, f"v_exp_f32 v{g1}, v{g1}"),
              (1, f"v_add_f32 v{g0}, 1.0, v{g0}"), (1, f"v_add_f32 v{g1}, 1.0, v{g1}"),
              (2, f"v_rcp_f32 v{g0}, v{g0}"), (2, f"v_rcp_f32 v{g1}, v{g1}"),
              (1, f"v_mul_f32 v{g0}, v{g0}, v{u0}"), (1, f"v_mul_f32 v{g1}, v{g1}, v{u1}"),
              (1, f"v_cvt_pk_bf16_f32 v{a + 8 + p}, v{g0}, v{g1}")]
    f.append((2, f"buffer_store_dwordx4 {vr(a + 8, 4)}, v{vL16}, s[{rWS}:{rWS+3}], s{soff} offen offset:{imm} sc1"))
    return f


def q_epi(a, t):
    f = []
    for half in range(2):
        b = a + 8 * half
        for p in range(4):
            f += [(1, f"v_mul_f32 v{b+2*p}, s{sQS}, v{b+2*p}"), (1, f"v_mul_f32 v{b+2*p+1}, s{sQS}, v{b+2*p+1}")]
        for p in range(4):
            f.append((1, f"v_cvt_pk_bf16_f32 v{b+p}, v{b+2*p}, v{b+2*p+1}"))
        f.append((1, f"s_add_u32 s{sQ1}, s{sQ0}, {(t + 4*half) * 65536}"))
        f.append((2, f"buffer_store_dwordx4 {vr(b, 4)}, v{vL16}, s[{rWS}:{rWS+3}], s{sQ1} offen sc1"))
    return f


def kv_epi():
    f = []
    for t in range(2):
        for half in range(2):
            b = B2 + 16 * t + 8 * half
            for p in range(4):
                f.append((1, f"v_cvt_pk_bf16_f32 v{b+p}, v{b+2*p}, v{b+2*p+1}"))
            so = (sKV00, sKV01, sKV10, sKV11)[2 * t + half]
            f.append((2, f"buffer_store_dwordx4 {vr(b, 4)}, v{vKV}, s[{rWS}:{rWS+3}], s{so} offen sc1"))
    return f


def c_phaseA(e, o, st):
    sa, sb, qa, qb_, stats = c_prologue(e, o, st)
    for u in range(NFR - 1):
        for r in tr_reads(u):
            e(r)
    stats(7)
    t0 = B2 + 8
    e(f"v_add_f32 v{sa}, v{sa}, v{sb}")
    e(f"v_add_f32 v{qa}, v{qa}, v{qb_}")
    e(f"v_mov_b32 v{sb}, v{sa}")
    e(f"v_mov_b32 v{qb_}, v{qa}")
    e(f"v_permlane32_swap_b32 v{sa}, v{sb}")
    e(f"v_permlane32_swap_b32 v{qa}, v{qb_}")
    e(f"v_add_f32 v{sa}, v{sa}, v{sb}")
    e(f"v_add_f32 v{qa}, v{qa}, v{qb_}")
    e(f"v_mul_f32 v{sa}, {hex(f2u(1/512))}, v{sa}")
    e(f"v_mul_f32 v{qa}, {hex(f2u(1/512))}, v{qa}")
    e(f"v_fma_f32 v{qa}, -v{sa}, v{sa}, v{qa}")
    e(f"v_max_f32 v{qa}, 0, v{qa}")
    e(f"v_add_f32 v{qa}, {hex(f2u(1e-5))}, v{qa}")
    e(f"v_rsq_f32 v{vRS}, v{qa}")
    e(f"s_mov_b32 s{sQS}, {hex(f2u(0.25*LOG2E))}")
    e(f"v_mul_f32 v{vNB}, v{sa}, v{vRS}")
    e(f"v_sub_f32 v{vNB}, 0, v{vNB}")

    def conv_a(i):
        ta, tb = t0 + 2 * (i % 2), t0 + 2 * (i % 2) + 1
        return [f"v_lshlrev_b32 v{ta}, 16, v{X+i}", f"v_and_b32 v{tb}, s{sMASK}, v{X+i}",
                f"v_fma_f32 v{ta}, v{ta}, v{vRS}, v{vNB}", f"v_fma_f32 v{tb}, v{tb}, v{vRS}, v{vNB}"]

    def conv_b(i):
        ta, tb = t0 + 2 * (i % 2), t0 + 2 * (i % 2) + 1
        return [f"v_cvt_pk_bf16_f32 v{X+i}, v{ta}, v{tb}"]

    LEAD = 6
    for i in range(LEAD):
        for t in conv_a(i):
            e(t)
        if i > 0:
            for t in conv_b(i - 1):
                e(t)
    at = {}
    for u in range(128):
        i = u + LEAD
        l = []
        if i < 128:
            l += conv_a(i)[:2]
        if i - 1 < 128:
            l += conv_b(i - 1)
        if i < 128:
            l += conv_a(i)[2:]
        at[u] = l
    run_pass(e, 0, 128, [], 0, at=at)
    st(e, 2)
    e(f"s_cmp_eq_u32 s{sW}, 0")
    e("s_cbranch_scc1 L_p2_q")
    e(f"s_cmp_eq_u32 s{sW}, 1")
    e("s_cbranch_scc1 L_p2_k")
    ffn1 = sum((ffn_epi(B0 + 16 * t, sH1, 1024 * t) for t in range(4)), [])
    qf = sum((q_epi(B0 + 16 * t, t) for t in range(4)), [])
    run_pass(e, 128, 192, ffn1, 4.7, start=2, vtype=True)
    e("s_branch L_p3")
    e("L_p2_q:")
    e("s_nop 4")
    run_pass(e, 128, 192, qf, 3, start=2)
    e("s_branch L_p3")
    e("L_p2_k:")
    e("s_nop 4")
    run_pass(e, 128, 192, ffn1, 4.7, start=2)
    e("L_p3:")
    e("s_nop 1")
    st(e, 3)
    at = {}
    at[192 + 44] = [f"v_mov_b32 v{vT}, 1", "s_waitcnt vmcnt(0)",
                    f"buffer_store_dword v{vT}, v{vL16}, s[{rB}:{rB+3}], 0 offen sc1"]
    prep = []
    prep += [f"v_mov_b32 v{r}, 0" for r in range(O0, O0 + 32)]
    prep += [f"v_mov_b32 v{r}, 0" for r in range(VB + 8, VB + 16)]
    prep += [f"v_mov_b32 v{r}, 0" for r in range(P1, P1 + 8)]
    tt = vT + 3
    prep += [f"v_mov_b32 v{vK}, v{vL16}",
             f"v_lshrrev_b32 v{tt}, 5, v{vL}",
             f"v_lshlrev_b32 v{tt}, 8, v{tt}",
             f"v_and_b32 v{vVA}, 15, v{vL}",
             f"v_lshl_add_u32 v{tt}, v{vVA}, 4, v{tt}",
             f"v_add_u32 v{vVA}, 1024, v{tt}",
             f"v_add_u32 v{vVB}, 1536, v{tt}",
             f"v_and_b32 v{tt}, 16, v{vL}",
             f"v_cmp_eq_u32 vcc, 0, v{tt}",
             f"v_mov_b32 v{tt}, 2048",
             f"s_nop 0",
             f"v_cndmask_b32 v{vVA}, v{tt}, v{vVA}, vcc",
             f"v_cndmask_b32 v{vVB}, v{tt}, v{vVB}, vcc"]
    prep += [f"s_lshl_b32 s{sT0}, s{sRT}, 4",
             f"s_add_u32 s{sT0}, s{sT0}, s{sGAM}",
             f"s_lshl_b32 s{sT0}, s{sT0}, 2",
             f"s_add_u32 s{sT0}, s{sT0}, {FH}",
             f"s_add_u32 s{rB}, s{sWS}, s{sT0}",
             f"s_addc_u32 s{rB+1}, s{sWS+1}, 0",
             f"s_lshl_b32 s{sQ0}, s{sHD}, 6",
             f"s_lshl_b32 s{sT0}, s{sQB}, 3",
             f"s_add_u32 s{sQ0}, s{sQ0}, s{sT0}",
             f"s_lshl_b32 s{sT0}, s{sJ}, 1",
             f"s_add_u32 s{sQ0}, s{sQ0}, s{sT0}",
             f"s_lshl_b32 s{sQ0}, s{sQ0}, 10",
             f"s_add_u32 s{sQ0}, s{sQ0}, {QOFF}"]
    u = 192 + 72
    i = 0
    while i < len(prep):
        at.setdefault(u, []).extend(prep[i:i + 2])
        i += 2
        u += 1
    assert u <= 320
    run_pass(e, 192, 320, kv_epi(), 2.5, start=3, at=at)
    st(e, 4)
    e("s_barrier")
    e(f"buffer_load_dwordx4 {vr(Q0, 4)}, v{vL16}, s[{rWS}:{rWS+3}], s{sQ0} offen sc1")
    e(f"buffer_load_dwordx4 {vr(Q1, 4)}, v{vL16}, s[{rWS}:{rWS+3}], s{sQ0} offen offset:1024 sc1")
    for t in range(3):
        for c, txt in ffn_epi(B0 + 16 * t, sH3, 1024 * t):
            e(txt)
    e("s_barrier")
    e(f"ds_read_b128 {vr(KB, 4)}, v{vK}")
    e(f"ds_read_b128 {vr(KB + 4, 4)}, v{vK} offset:{KVP}")
    last = ffn_epi(B0 + 48, sH3, 3072)
    for c, txt in last[:13]:
        e(txt)
    e("s_waitcnt vmcnt(3) lgkmcnt(0)")
    est = [(S0, KB, Q0), (C0, KB + 4, Q0), (S1, KB, Q1), (C1, KB + 4, Q1)]
    k = 13
    for d, kk, q in est:
        e(f"v_mfma_f32_32x32x16_bf16 {vr(d, 16)}, {vr(kk, 4)}, {vr(q, 4)}, 0")
        for c, txt in last[k:k + 5]:
            e(txt)
        k += 5
    for c, txt in last[k:]:
        e(txt)
    for S, C in ((S0, C0), (S1, C1)):
        e(f"v_max3_f32 v{S}, v{S}, v{S+1}, v{S+2}")
        e(f"v_max3_f32 v{S+3}, v{S+3}, v{S+4}, v{S+5}")
        vals = [S + i for i in range(6, 16)] + [C + i for i in range(16)]
        for i in range(0, len(vals), 2):
            acc = S if (i // 2) % 2 == 0 else S + 3
            e(f"v_max3_f32 v{acc}, v{acc}, v{vals[i]}, v{vals[i+1]}")
        e(f"v_max_f32 v{S}, v{S}, v{S+3}")
        e(f"v_mov_b32 v{S+3}, v{S}")
    for S in (S0, S1):
        e(f"v_permlane32_swap_b32 v{S}, v{S+3}")
    margin = -1000.0 if o.force_fallback else 80.0
    e(f"s_mov_b32 s{sT0}, {hex(f2u(-margin))}")
    for S, C in ((S0, C0), (S1, C1)):
        e(f"v_max_f32 v{S}, v{S}, v{S+3}")
        e(f"v_sub_f32 v{C}, s{sT0}, v{S}")
    for i in range(1, 16):
        e(f"v_mov_b32 v{C0+i}, v{C0}")
    e(f"v_mfma_f32_32x32x16_bf16 {vr(S0, 16)}, {vr(KB, 4)}, {vr(Q0, 4)}, {vr(C0, 16)}")
    for i in range(1, 16):
        e(f"v_mov_b32 v{C1+i}, v{C1}")


def unit(S, Pd, qk, pv0, pv1, head=(), mid=()):
    ex = [f"v_exp_f32 v{S+i}, v{S+i}" for i in range(16)]
    cv = [f"v_cvt_pk_bf16_f32 v{Pd+i}, v{S+2*i}, v{S+2*i+1}" for i in range(8)]
    seq = [ex[0], ex[1]]
    for i in range(1, 8):
        seq += [ex[2 * i], ex[2 * i + 1], cv[i - 1]]
    seq.append(cv[7])
    return [qk] + list(head) + seq[:8] + [pv0] + list(mid) + seq[8:16] + [pv1] + seq[16:]


def mf(d, a, b, c):
    return f"v_mfma_f32_32x32x16_bf16 {vr(d, 16)}, {vr(a, 4)}, {vr(b, 4)}, {vr(c, 16)}"


def c_attention(e, o, st):
    if o.prioB_C:
        e(f"s_setprio {o.prioB_C}")
    e(f"s_mov_b32 s{sIT}, 0")
    e(f"v_mov_b32 v{vT+3}, 1")
    st(e, 5)
    e("s_branch L_att")
    e(".p2align 6")
    e("L_att_bar:")
    e("s_barrier")
    e("L_att:")
    body = Emit()
    for kt in range(8):
        kc, kn = KB + 4 * (kt & 1), KB + 4 * ((kt + 1) & 1)
        vc, vp = VB + 8 * (kt & 1), VB + 8 * ((kt + 1) & 1)
        head = [f"ds_read_b128 {vr(kn, 4)}, v{vK} offset:{(kt+1)*KVP}",
                f"ds_read_b128 {vr(vc, 4)}, v{vVA} offset:{kt*KVP}",
                f"ds_read_b128 {vr(vc+4, 4)}, v{vVB} offset:{kt*KVP}"]
        mid = []
        if kt == 3:
            mid = ["s_waitcnt vmcnt(0)",
                   f"buffer_store_dword v{vT+3}, v{vL16}, s[{rB}:{rB+3}], 0 offen sc1",
                   f"s_mov_b32 s{rB+2}, 0"]
        for t in unit(S0, P0, mf(S1, kc, Q1, C1), mf(O1, vp, P1, O1), mf(O1, vp + 4, P1 + 4, O1), head, mid):
            body(t)
        body("s_waitcnt lgkmcnt(0)")
        mid = []
        if kt == 7:
            mid = [f"v_add_u32 v{vK}, {8*KVP}, v{vK}", f"v_add_u32 v{vVA}, {8*KVP}, v{vVA}",
                   f"v_add_u32 v{vVB}, {8*KVP}, v{vVB}"]
        for t in unit(S1, P1, mf(S0, kn, Q0, C0), mf(O0, vc, P0, O0), mf(O0, vc + 4, P0 + 4, O0), (), mid):
            body(t)
    body(f"s_add_u32 s{sIT}, s{sIT}, 1")
    body(f"s_bitcmp1_b32 {(1 << 1) | (1 << 6) | (1 << 7)}, s{sIT}")
    body("s_cbranch_scc1 L_att_bar")
    body(f"s_cmp_lt_u32 s{sIT}, 8")
    body("s_cbranch_scc1 L_att")
    check(body.seq + body.seq, what="attention loop")
    e.extend(body)
    vp = VB + 8
    e(mf(O1, vp, P1, O1))
    e(mf(O1, vp + 4, P1 + 4, O1))
    st(e, 6)
    e(f"s_lshl_b32 s{sT0}, s{sQB}, 2")
    e(f"s_add_u32 s{sT0}, s{sT0}, s{sJ}")
    e(f"s_lshl_b32 s{sQ0}, s{sT0}, 6")
    e(f"s_add_u32 s{sQ0}, s{sQ0}, s{sHD}")
    e(f"s_lshl_b32 s{sQ0}, s{sQ0}, 10")
    e(f"s_add_u32 s{sQ0}, s{sQ0}, {OOFF}")
    e(f"s_add_u32 s{sQ1}, s{sQ0}, 32768")
    e(f"s_lshl_b32 s{sT0}, s{sT0}, 5")
    e(f"s_add_u32 s{sT0}, s{sT0}, s{sHD}")
    e(f"s_lshl_b32 s{sT0}, s{sT0}, 2")
    e(f"s_add_u32 s{sT0}, s{sT0}, {FO}")
    e(f"s_add_u32 s{rB}, s{sWS}, s{sT0}")
    e(f"s_addc_u32 s{rB+1}, s{sWS+1}, 0")
    e(f"s_mov_b32 s{rB+2}, 4")
    sBIG, sSML, sM = sKV00, sKV01, sT0 + 17
    assert sM % 2 == 0
    e(f"s_mov_b32 s{sBIG}, {hex(f2u(2.0**126))}")
    e(f"s_mov_b32 s{sSML}, {hex(f2u(2.0**-100))}")
    for n, O in enumerate((O0, O1)):
        t = S0 + 2 * n
        e(f"v_add_f32 v{t}, |v{O}|, |v{O+1}|")
        for i in range(2, 8):
            e(f"v_add_f32 v{t}, |v{O+i}|, v{t}")
        e(f"v_add_f32 v{t+1}, v{t}, v{O+8}")
    e(f"v_min_f32 v{S0+4}, v{S0}, v{S0+2}")
    e(f"v_add_f32 v{S0+5}, v{S0+1}, v{S0+3}")
    e(f"v_cmp_gt_f32 s[{sM}:{sM+1}], s{sSML}, v{S0+4}")
    e(f"v_cmp_ngt_f32 vcc, s{sBIG}, v{S0+5}")
    e("s_nop 1")
    e(f"s_or_b64 vcc, vcc, s[{sM}:{sM+1}]")
    e("s_cbranch_vccnz L_fallback")
    e("L_normalise:")
    for O, so in ((O0, sQ0), (O1, sQ1)):
        e(f"v_rcp_f32 v{O+8}, v{O+8}")
        e("s_nop 0")
        for i in range(8):
            e(f"v_mul_f32 v{O+i}, v{O+i}, v{O+8}")
        for p in range(4):
            e(f"v_cvt_pk_bf16_f32 v{O+p}, v{O+2*p}, v{O+2*p+1}")
        e(f"buffer_store_dwordx4 {vr(O, 4)}, v{vL16}, s[{rWS}:{rWS+3}], s{so} offen sc1")
    e("s_waitcnt vmcnt(0)")
    e(f"buffer_store_dword v{vT+3}, v{vL16}, s[{rB}:{rB+3}], 0 offen sc1")
    st(e, 7)
    st.flush(e, 8, vt=10)
    e("s_endpgm")

    e("L_fallback:")
    sKVB, sCN, sSO = sKV10, sKV11, sH1
    e(f"s_lshl_b32 s{sKVB}, s{sHD}, 17")
    tt = vT + 4
    e(f"v_lshrrev_b32 v{tt}, 5, v{vL}")
    e(f"v_lshlrev_b32 v{tt}, 8, v{tt}")
    e(f"v_and_b32 v{vVA}, 15, v{vL}")
    e(f"v_lshl_add_u32 v{vVA}, v{vVA}, 4, v{tt}")
    e(f"v_and_b32 v{tt}, 16, v{vL}")
    e(f"v_cmp_eq_u32 s[{sM}:{sM+1}], 0, v{tt}")
    e(f"v_mov_b32 v{tt}, s{sONE}")
    for n, (Q, O) in enumerate(((Q0, O0), (Q1, O1))):
        m = P1
        e(f"v_mov_b32 v{m}, 0xff800000")
        e(f"s_mov_b32 s{sSO}, s{sKVB}")
        e(f"s_mov_b32 s{sCN}, 64")
        e(f"L_fb_max{n}:")
        e(f"buffer_load_dwordx4 {vr(KB, 4)}, v{vL16}, s[{rWS}:{rWS+3}], s{sSO} offen sc1")
        e("s_waitcnt vmcnt(0)")
        e(f"v_mfma_f32_32x32x16_bf16 {vr(S0, 16)}, {vr(KB, 4)}, {vr(Q, 4)}, 0")
        e(f"s_add_u32 s{sSO}, s{sSO}, 2048")
        e(f"s_sub_u32 s{sCN}, s{sCN}, 1")
        e("s_nop 11")
        for i in range(0, 16, 2):
            e(f"v_max3_f32 v{m}, v{m}, v{S0+i}, v{S0+i+1}")
        e(f"s_cmp_lg_u32 s{sCN}, 0")
        e(f"s_cbranch_scc1 L_fb_max{n}")
        e(f"v_mov_b32 v{m+1}, v{m}")
        e(f"v_permlane32_swap_b32 v{m}, v{m+1}")
        e(f"v_max_f32 v{m}, v{m}, v{m+1}")
        for i in range(16):
            e(f"v_sub_f32 v{C0+i}, 0, v{m}")
            e(f"v_mov_b32 v{O+i}, 0")
        e(f"s_mov_b32 s{sSO}, s{sKVB}")
        e(f"s_mov_b32 s{sCN}, 64")
        e(f"L_fb_acc{n}:")
        e(f"buffer_load_dwordx4 {vr(KB, 4)}, v{vL16}, s[{rWS}:{rWS+3}], s{sSO} offen sc1")
        e(f"buffer_load_dwordx4 {vr(VB, 4)}, v{vVA}, s[{rWS}:{rWS+3}], s{sSO} offen offset:1024 sc1")
        e(f"buffer_load_dwordx4 {vr(VB+4, 4)}, v{vVA}, s[{rWS}:{rWS+3}], s{sSO} offen offset:1536 sc1")
        e("s_waitcnt vmcnt(0)")
        e(mf(S0, KB, Q, C0))
        for i in range(8):
            e(f"v_cndmask_b32 v{VB+i}, v{tt}, v{VB+i}, s[{sM}:{sM+1}]")
        e(f"s_add_u32 s{sSO}, s{sSO}, 2048")
        e(f"s_sub_u32 s{sCN}, s{sCN}, 1")
        e("s_nop 3")
        for i in range(16):
            e(f"v_exp_f32 v{S0+i}, v{S0+i}")
        e("s_nop 0")
        for i in range(8):
            e(f"v_cvt_pk_bf16_f32 v{P0+i}, v{S0+2*i}, v{S0+2*i+1}")
        e("s_nop 1")
        e(mf(O, VB, P0, O))
        e(mf(O, VB + 4, P0 + 4, O))
        e(f"s_cmp_lg_u32 s{sCN}, 0")
        e("s_nop 11")
        e(f"s_cbranch_scc1 L_fb_acc{n}")
    e("s_branch L_normalise")


hP1, hP2, hP3, hT = 2, 3, 4, 5
sSO1, sSO2, sSO3, sPI1, sM4, sM2, sSX, sKVG, sKVL, sCNT, sRJ, sHO, sWO2 = range(sT0 + 1, sT0 + 14)
POLL_LIMIT = 1 << 20


class VM:
    def __init__(self):
        self.q = []

    def issue(self, tag):
        self.q.append(tag)

    def wait_for(self, e, tag):
        idx = max(i for i, t in enumerate(self.q) if t == tag)
        n = len(self.q) - 1 - idx
        assert n <= 63
        e(f"s_waitcnt vmcnt({n})")
        self.q = self.q[idx + 1:]


def poll(e, label, loads, tests, first_issued=False):
    e(f"s_mov_b32 s{sCNT}, {POLL_LIMIT}")
    if first_issued:
        e(f"s_branch {label}_chk")
    e(f"{label}:")
    for l in loads:
        e(l)
    e("s_waitcnt vmcnt(0)")
    e(f"{label}_chk:")
    for t in tests:
        e(t)
    e(f"s_cbranch_vccz {label}_ok")
    e(f"s_sub_u32 s{sCNT}, s{sCNT}, 1")
    e(f"s_cbranch_scc1 {label}_ok")
    e("s_sleep 1")
    e(f"s_branch {label}")
    e(f"{label}_ok:")


def w_dma(e, vm, s):
    if s < 16:
        r, v, so, m, P, step = rA, hP1, sSO1, sM4, 1056, None
    elif s < 24:
        r, v, so, m, P, step = rB, hP2, sSO2, sM2, 1088, 3072
    else:
        r, v, so, m, P, step = rC, hP3, sSO3, sM4, 1056, 3584
    e(f"s_add_u32 m0, s{m}, {slot_addr(s)}")
    if step is None:
        e(f"s_add_u32 s{sSX}, s{so}, s{sPI1}")
    else:
        e(f"s_add_u32 s{sSX}, s{so}, {step}")
    e(f"buffer_load_dwordx4 v{v}, s[{r}:{r+3}], s{so} offen lds")
    e(f"s_add_u32 m0, s{m}, {slot_addr(s) + P}")
    if s < 16:
        e(f"s_lshl_b32 s{sT0}, s{sPI1}, 5")
        e(f"s_add_u32 s{so}, s{so}, s{sT0}")
    elif s < 24:
        e(f"s_add_u32 s{so}, s{so}, {64*3072}")
    else:
        e(f"s_add_u32 s{so}, s{so}, {32*3584}")
    e(f"buffer_load_dwordx4 v{v}, s[{r}:{r+3}], s{sSX} offen lds")
    vm.issue(("w", s))
    vm.issue(("w", s))


def kv_dma(e, vm, n, tag):
    for _ in range(n):
        e(f"s_mov_b32 m0, s{sKVL}")
        e(f"s_add_u32 s{sKVL}, s{sKVL}, {4*KVP}")
        e(f"buffer_load_dwordx4 v{vL16}, s[{rWS}:{rWS+3}], s{sKVG} offen sc1 lds")
        e(f"buffer_load_dwordx4 v{vL16}, s[{rWS}:{rWS+3}], s{sKVG} offen offset:1024 sc1 lds")
        e(f"s_add_u32 s{sKVG}, s{sKVG}, 8192")
        vm.issue(tag)
        vm.issue(tag)


def h_phaseA(e, o, st):
    vm = VM()
    e("L_helper:")
    e(f"s_setprio {o.prioA_H}")
    t0, t1, t2, t3 = hT, hT + 1, hT + 2, hT + 3
    e(f"v_and_b32 v{t0}, 3, v{vL}")
    e(f"v_lshrrev_b32 v{t1}, 2, v{vL}")
    e(f"s_lshl_b32 s{sT0}, s{sRBK}, 2")
    e(f"v_add_u32 v{t2}, s{sT0}, v{t0}")
    e(f"s_lshl_b32 s{sT0}, s{sGAM}, 6")
    e(f"v_add_u32 v{t3}, s{sT0}, v{t2}")
    e(f"v_lshlrev_b32 v{t2}, 4, v{t2}")
    e(f"s_add_u32 s{sT0}, s{sGAM}, 1024")
    e(f"v_add_u32 v{t2}, s{sT0}, v{t2}")
    e(f"v_cmp_eq_u32 vcc, 1, v{t1}")
    e(f"s_lshl_b32 s{sT0}, s{sQB}, 2")
    e(f"v_add_u32 v{t0}, s{sT0}, v{t0}")
    e(f"v_cndmask_b32 v{t3}, v{t3}, v{t2}, vcc")
    e(f"v_lshlrev_b32 v{t0}, 5, v{t0}")
    e(f"s_add_u32 s{sT0}, s{sHD}, 2048")
    e(f"v_add_u32 v{t0}, s{sT0}, v{t0}")
    e(f"v_cmp_eq_u32 vcc, 2, v{t1}")
    e(f"s_cmp_eq_u32 s{sJ}, 0")
    e(f"s_cselect_b32 s{sT0}, 12, 0")
    e(f"v_cndmask_b32 v{t3}, v{t3}, v{t0}, vcc")
    e(f"v_lshlrev_b32 v{t3}, 2, v{t3}")
    e(f"v_add_u32 v{t3}, {FQ}, v{t3}")
    e(f"v_cmp_gt_u32 vcc, s{sT0}, v{vL}")
    e(f"v_mov_b32 v{t0}, 0x7ffffff0")
    e(f"v_mov_b32 v{t1}, 0")
    e(f"v_cndmask_b32 v{t3}, v{t0}, v{t3}, vcc")
    e(f"buffer_store_dword v{t1}, v{t3}, s[{rWS}:{rWS+3}], 0 offen sc1")
    vm.issue("clear")
    e(f"s_cmp_lt_u32 s{sJ}, 2")
    e(f"s_cselect_b32 s{rC}, s{sW1}, s{sW3}")
    e(f"s_cselect_b32 s{rC+1}, s{sW1+1}, s{sW3+1}")
    e(f"s_mov_b32 s{rC+2}, {512*3584}")
    e(f"s_mov_b32 s{rC+3}, 0x00020000")
    srd(e, rB, sWQKV, 512 * 3072)
    e(f"s_cmp_eq_u32 s{sW}, 0")
    e(f"s_cselect_b32 s{rA}, s{rB}, s{rC}")
    e(f"s_cselect_b32 s{rA+1}, s{rB+1}, s{rC+1}")
    e(f"s_cselect_b32 s{rA+2}, s{rB+2}, s{rC+2}")
    e(f"s_mov_b32 s{rA+3}, 0x00020000")
    e(f"s_movk_i32 s{sT0}, 3584")
    e(f"s_cselect_b32 s{sPI1}, 3072, s{sT0}")
    sq, si = sKVG, sKVL
    e(f"s_lshr_b32 s{sq}, s{sJ}, 1")
    e(f"s_and_b32 s{si}, s{sJ}, 1")
    e(f"s_lshl_b32 s{si}, s{si}, 1")
    e(f"s_mul_i32 s{sSO3}, s{sSET}, 7")
    e(f"s_lshl_b32 s{sT0}, s{sW}, 1")
    e(f"s_add_u32 s{sSO3}, s{sSO3}, s{sT0}")
    e(f"s_sub_u32 s{sSO1}, s{sSO3}, 1")
    e(f"s_lshl_b32 s{sT0}, s{sSET}, 1")
    e(f"s_add_u32 s{sSO2}, s{sT0}, s{sq}")
    e(f"s_cmp_eq_u32 s{sW}, 0")
    e(f"s_cselect_b32 s{sSO1}, s{sSO2}, s{sSO1}")
    e(f"s_lshl_b32 s{sSO1}, s{sSO1}, 7")
    e(f"s_lshl_b32 s{sSO3}, s{sSO3}, 7")
    e(f"s_and_b32 s{sSO2}, s{sW}, 1")
    e(f"s_add_u32 s{sSO2}, s{sSO2}, s{sT0}")
    e(f"s_lshl_b32 s{sSO2}, s{sSO2}, 7")
    e(f"s_lshr_b32 s{sT0}, s{sW}, 1")
    e(f"s_add_u32 s{sT0}, s{sT0}, 1")
    e(f"s_lshl_b32 s{sT0}, s{sT0}, 10")
    e(f"s_add_u32 s{sSO2}, s{sSO2}, s{sT0}")
    sC1, sC2, sC3 = sRJ, sHO, sWO2
    e(f"s_mov_b32 s{sC1}, s{sSO1}")
    e(f"s_mov_b32 s{sC2}, s{sSO2}")
    e(f"s_mov_b32 s{sC3}, s{sSO3}")
    e(f"s_mul_i32 s{sT0}, s{si}, s{sPI1}")
    e(f"s_add_u32 s{sSO1}, s{sSO1}, s{sT0}")
    e(f"s_mul_i32 s{sT0}, s{si}, 3584")
    e(f"s_add_u32 s{sSO3}, s{sSO3}, s{sT0}")
    e(f"s_lshl_b32 s{sT0}, s{sq}, 5")
    e(f"s_add_u32 s{sT0}, s{sT0}, s{si}")
    e(f"s_mul_i32 s{sT0}, s{sT0}, 3072")
    e(f"s_add_u32 s{sSO2}, s{sSO2}, s{sT0}")
    e(f"s_mul_i32 s{sM4}, s{sq}, 4224")
    e(f"s_mul_i32 s{sT0}, s{si}, 1056")
    e(f"s_add_u32 s{sM4}, s{sM4}, s{sT0}")
    e(f"s_mul_i32 s{sM2}, s{sq}, 4352")
    e(f"s_mul_i32 s{sT0}, s{si}, 1088")
    e(f"s_add_u32 s{sM2}, s{sM2}, s{sT0}")
    e(f"v_lshrrev_b32 v{t0}, 3, v{vL}")
    e(f"v_and_b32 v{t1}, 7, v{vL}")
    e(f"v_lshlrev_b32 v{t1}, 4, v{t1}")
    e(f"s_lshl_b32 s{sT0}, s{sPI1}, 2")
    e(f"v_mad_u32_u24 v{hP1}, v{t0}, s{sT0}, v{t1}")
    e(f"v_mul_u32_u24 v{hP2}, {4*3072}, v{t0}")
    e(f"v_add_u32 v{hP2}, v{hP2}, v{t1}")
    e(f"v_mul_u32_u24 v{hP3}, {4*3584}, v{t0}")
    e(f"v_add_u32 v{hP3}, v{hP3}, v{t1}")
    for s in range(3):
        w_dma(e, vm, s)
    pf = hT + 6
    if o.codepf:
        e(f"s_getpc_b64 s[{rE}:{rE+1}]")
        e("L_pc:")
        e(f"s_sub_u32 s{rE}, s{rE}, L_pc-{NAME}_kernel")
        e(f"s_subb_u32 s{rE+1}, s{rE+1}, 0")
        e(f"s_mov_b32 s{rE+2}, L_code_end-{NAME}_kernel")
        e(f"s_mov_b32 s{rE+3}, 0x00020000")
        e(f"v_lshlrev_b32 v{t0}, 7, v{vL}")
        e(f"s_lshl_b32 s{sT0}, s{sJ}, 13")
        e(f"v_add_u32 v{t0}, s{sT0}, v{t0}")
        e(f"v_add_u32 v{t1}, 32768, v{t0}")
        e(f"buffer_load_dword v{pf}, v{t0}, s[{rE}:{rE+3}], 0 offen")
        e(f"buffer_load_dword v{pf}, v{t1}, s[{rE}:{rE+3}], 0 offen")
        vm.issue("pf")
        vm.issue("pf")
    if o.wpf:
        e(f"s_lshl_b32 s{sT0}, s{sQB}, 6")
        e(f"s_lshl_b32 s{sSX}, s{si}, 4")
        e(f"s_add_u32 s{sT0}, s{sT0}, s{sSX}")
        e(f"v_and_b32 v{t0}, 31, v{vL}")
        e(f"v_add_u32 v{t0}, s{sT0}, v{t0}")
        e(f"v_mul_u32_u24 v{t1}, s{sPI1}, v{t0}")
        e(f"buffer_load_dword v{pf}, v{t1}, s[{rA}:{rA+3}], s{sC1} offen")
        vm.issue("pf")
        e(f"v_mul_u32_u24 v{t2}, 3584, v{t0}")
        e(f"v_mul_u32_u24 v{t3}, 3072, v{t0}")
    vm.wait_for(e, "clear")
    srd(e, rD, sDBG, 256)
    e(f"s_and_b32 s{sT0}, s2, 1")
    e(f"s_lshl_b32 s{sT0}, s{sT0}, 7")
    e(f"s_cmp_eq_u32 s{sJ}, 0")
    e(f"s_cselect_b32 s{sT0}, s{sT0}, 4096")
    e(f"v_lshlrev_b32 v{t0}, 12, v{vL}")
    e(f"v_add_u32 v{t0}, s{sT0}, v{t0}")
    e(f"v_mov_b32 v{t1}, 1")
    e(f"buffer_atomic_add v{t1}, v{t0}, s[{rD}:{rD+3}], 0 offen sc1")
    vm.issue("atomic")
    e(f"s_lshl_b32 s{sKVG}, s{sHD}, 6")
    e(f"s_add_u32 s{sKVG}, s{sKVG}, s{sJ}")
    e(f"s_lshl_b32 s{sKVG}, s{sKVG}, 11")
    e(f"s_mul_i32 s{sKVL}, s{sJ}, {KVP}")
    vOA, vON = hT + 7, hT + 3 + 8
    vON = 16
    for i in range(4):
        e(f"v_mov_b32 v{vON+i}, 0x3f803f80")
    e(f"v_min_u32 v{vOA}, 47, v{vL}")
    e(f"v_mul_u32_u24 v{vOA}, {KVP}, v{vOA}")
    vC, vF0, vF1, vF2, vFA = 20, 21, 22, 23, 24
    e(f"v_and_b32 v{vFA}, 1, v{vL}")
    e(f"v_lshlrev_b32 v{vFA}, 7, v{vFA}")
    cnt_load = [f"buffer_load_dword v{vC}, v{vFA}, s[{rD}:{rD+3}], 0 offen sc1"]
    cnt_test = [f"v_cmp_ne_u32 vcc, 0x80, v{vC}"]
    sFQ, sFK, sFV = sT0 + 14, sT0 + 15, sT0 + 16
    e(f"s_lshr_b32 s{sT0}, s{sHD}, 3")
    e(f"s_lshl_b32 s{sFQ}, s{sT0}, 10")
    e(f"s_add_u32 s{sFQ}, s{sFQ}, {FQ}")
    e(f"s_bfe_u32 s{sT0}, s{sHD}, 0x10002")
    e(f"s_lshl_b32 s{sT0}, s{sT0}, 8")
    e(f"s_add_u32 s{sFK}, s{sFQ}, s{sT0}")
    e(f"s_add_u32 s{sFV}, s{sFK}, 512")
    vL4 = 25
    e(f"v_lshlrev_b32 v{vL4}, 2, v{vL}")
    fl_load = [f"buffer_load_dword v{v}, v{vL4}, s[{rWS}:{rWS+3}], s{s} offen sc1"
               for v, s in ((vF0, sFQ), (vF1, sFK), (vF2, sFV))]
    fl_test = [f"v_and_b32 v{vF0}, v{vF0}, v{vF1}", f"v_and_b32 v{vF0}, v{vF0}, v{vF2}",
               f"v_cmp_ne_u32 vcc, 1, v{vF0}"]
    nxt = 3
    for b in range(LAST_W_BARRIER + 1):
        vm.wait_for(e, ("w", b if b < LAST_W_BARRIER else 39))
        if b == 0:
            st(e, 1)
        e("s_barrier")
        while nxt <= min(39, b + 5):
            w_dma(e, vm, nxt)
            nxt += 1
        if b == 0:
            e(f"ds_write_b128 v{vOA}, {vr(vON, 4)} offset:2048")
            e(f"v_mul_u32_u24 v{vOA}, {KVP}, v{vL}")
            if o.wpf:
                e(f"buffer_load_dword v{pf}, v{t3}, s[{rB}:{rB+3}], s{sC2} offen")
                e(f"buffer_load_dword v{pf}, v{t2}, s[{rC}:{rC+3}], s{sC3} offen")
                vm.issue("pf")
                vm.issue("pf")
        if b == 18:
            e(cnt_load[0])
            vm.issue("cnt")
        if b == 24:
            assert "cnt" not in vm.q
            poll(e, "L_poll_cnt", cnt_load, cnt_test, first_issued=True)
        if b == 35:
            for l in fl_load:
                e(l)
                vm.issue("fl")
    st(e, 2)
    e("s_waitcnt vmcnt(0)")
    vm.q = []
    poll(e, "L_poll_kv", fl_load, fl_test, first_issued=True)
    st(e, 3)
    kv_dma(e, vm, 4, "kv0")
    e("s_barrier")
    kv_dma(e, vm, 4, "kv1")
    e(f"ds_write_b128 v{vOA}, {vr(vON, 4)} offset:2048")
    vm.wait_for(e, "kv0")
    e("s_waitcnt lgkmcnt(0)")
    e("s_barrier")
    kv_dma(e, vm, 8, "kv2")
    return vm


WO, ACC, HB, WF = 128, 64, 16, 48
vW, vRA, vRB, vRC = 2, 3, 4, 6


def h_phaseB(e, o, st, vm):
    e(f"s_setprio {o.prioB_H}")
    st(e, 4)
    t0, t1, t2 = hT + 3, hT + 4, hT + 5
    e(f"s_mul_i32 s{sRJ}, s{sJ}, {RBW}")
    e(f"s_add_u32 s{sRJ}, s{sRJ}, {RB}")
    e(f"v_lshrrev_b32 v{t0}, 3, v{vL}")
    e(f"v_and_b32 v{t1}, 7, v{vL}")
    e(f"v_lshlrev_b32 v{t1}, 4, v{t1}")
    e(f"v_lshl_add_u32 v{vW}, v{t0}, 10, v{t1}")
    e(f"v_bfe_u32 v{t0}, v{vL}, 2, 2")
    e(f"v_lshrrev_b32 v{t1}, 5, v{vL}")
    e(f"v_lshl_add_u32 v{t0}, v{t1}, 2, v{t0}")
    e(f"v_lshlrev_b32 v{t0}, 7, v{t0}")
    e(f"v_bfe_u32 v{t1}, v{vL}, 4, 1")
    e(f"v_lshl_add_u32 v{t0}, v{t1}, 5, v{t0}")
    e(f"v_and_b32 v{t1}, 3, v{vL}")
    e(f"v_lshl_add_u32 v{t0}, v{t1}, 3, v{t0}")
    e(f"v_add_u32 v{vRA}, s{sRJ}, v{t0}")
    e(f"s_and_b32 s{sT0}, s{sJ}, 1")
    e(f"s_lshl_b32 s{sT0}, s{sT0}, 6")
    e(f"v_add_u32 v{vRB}, s{sT0}, v{vRA}")
    e(f"s_xor_b32 s{sT0}, s{sT0}, 64")
    e(f"v_add_u32 v{vRC}, s{sT0}, v{vRA}")

    def w_stage(r, ks, tag):
        sl = (ks % 3) * 2048
        e(f"s_add_u32 m0, s{sRJ}, {sl}")
        e(f"s_add_u32 s{sSX}, s{sWO2}, 8192")
        e(f"buffer_load_dwordx4 v{vW}, s[{r}:{r+3}], s{sWO2} offen lds")
        e(f"s_add_u32 m0, s{sRJ}, {sl + 1024}")
        e(f"s_add_u32 s{sWO2}, s{sWO2}, 16384")
        e(f"buffer_load_dwordx4 v{vW}, s[{r}:{r+3}], s{sSX} offen lds")
        vm.issue(tag)
        vm.issue(tag)

    srd(e, rA, sWO, 512 * 1024)
    srd(e, rB, sW2, 1792 * 1024)
    e(f"s_and_b32 s{sWO2}, s{sJ}, 1")
    e(f"s_lshl_b32 s{sWO2}, s{sWO2}, 18")
    e(f"s_lshl_b32 s{sT0}, s{sQB}, 7")
    e(f"s_add_u32 s{sWO2}, s{sWO2}, s{sT0}")
    for ks in range(3):
        w_stage(rA, ks, ("wo", ks))
    for ks in range(16):
        vm.wait_for(e, ("wo", ks))
        sl = (ks % 3) * 2048
        for n, a in enumerate((vRB, vRC)):
            d = WO + 8 * ks + 4 * n
            e(f"ds_read_b64_tr_b16 {vr(d, 2)}, v{a} offset:{sl}")
            e(f"ds_read_b64_tr_b16 {vr(d+2, 2)}, v{a} offset:{sl + 1024}")
        if ks + 3 < 16:
            e("s_waitcnt lgkmcnt(0)")
            w_stage(rA, ks + 3, ("wo", ks + 3))
    assert not vm.q
    e("s_waitcnt lgkmcnt(0)")
    e(f"s_mul_i32 s{sWO2}, s{sJ}, {28*16384}")
    e(f"s_lshl_b32 s{sT0}, s{sQB}, 7")
    e(f"s_add_u32 s{sWO2}, s{sWO2}, s{sT0}")
    st(e, 5)
    e("s_barrier")
    e(f"v_and_b32 v{t0}, 31, v{vL}")
    e(f"v_lshlrev_b32 v{t0}, 2, v{t0}")
    e(f"s_lshl_b32 s{sHO}, s{sHD}, 7")
    e(f"s_add_u32 s{sHO}, s{sHO}, {FH}")
    poll(e, "L_poll_h", [f"buffer_load_dword v{t1}, v{t0}, s[{rWS}:{rWS+3}], s{sHO} offen sc1"],
         [f"v_cmp_ne_u32 vcc, 1, v{t1}"])
    sHB = sSO1
    e(f"s_mul_i32 s{sHO}, s{sHD}, 224")
    e(f"s_mul_i32 s{sT0}, s{sJ}, 28")
    e(f"s_add_u32 s{sHO}, s{sHO}, s{sT0}")
    e(f"s_lshl_b32 s{sHO}, s{sHO}, 10")
    e(f"s_add_u32 s{sHO}, s{sHO}, {HOFF}")
    e(f"s_add_u32 s{sHB}, s{sHO}, {112*1024}")

    def h_load(ks):
        d = HB + 8 * (ks % 4)
        imm = (ks % 4) * 1024
        e(f"buffer_load_dwordx4 {vr(d, 4)}, v{vL16}, s[{rWS}:{rWS+3}], s{sHO} offen offset:{imm} sc1")
        e(f"buffer_load_dwordx4 {vr(d+4, 4)}, v{vL16}, s[{rWS}:{rWS+3}], s{sHB} offen offset:{imm} sc1")
        if ks % 4 == 3:
            e(f"s_add_u32 s{sHO}, s{sHO}, 4096")
            e(f"s_add_u32 s{sHB}, s{sHB}, 4096")
        vm.issue(("k", ks))
        vm.issue(("k", ks))

    for ks in range(3):
        w_stage(rB, ks, ("k", ks))
        h_load(ks)
    for ks in range(28):
        vm.wait_for(e, ("k", ks))
        sl = (ks % 3) * 2048
        hb = HB + 8 * (ks % 4)
        wf = WF + 8 * (ks % 2)

        def mm(a, b):
            acc = ACC + 16 * (2 * a + b)
            c = "0" if ks == 0 else vr(acc, 16)
            e(f"v_mfma_f32_32x32x16_bf16 {vr(acc, 16)}, {vr(wf + 4*b, 4)}, {vr(hb + 4*a, 4)}, {c}")
        for b in range(2):
            e(f"ds_read_b64_tr_b16 {vr(wf + 4*b, 2)}, v{vRA} offset:{sl + 64*b}")
            e(f"ds_read_b64_tr_b16 {vr(wf + 4*b + 2, 2)}, v{vRA} offset:{sl + 64*b + 1024}")
        e("s_waitcnt lgkmcnt(0)")
        mm(0, 0)
        if ks + 3 < 28:
            w_stage(rB, ks + 3, ("k", ks + 3))
        mm(1, 0)
        if ks + 3 < 28:
            h_load(ks + 3)
        mm(0, 1)
        mm(1, 1)
    st(e, 6)
    XR, G = 8, 48
    srd(e, rA, sX, 2097152)
    srd(e, rB, sOUT, 2097152)
    sXO = sSO2
    e(f"s_lshl_b32 s{sXO}, s{sHD}, 1")
    e(f"s_lshr_b32 s{sT0}, s{sJ}, 1")
    e(f"s_add_u32 s{sXO}, s{sXO}, s{sT0}")
    sRTL = sSO3
    e(f"s_mov_b32 s{sRTL}, s{sXO}")
    e(f"s_lshl_b32 s{sXO}, s{sXO}, 15")
    e(f"s_lshl_b32 s{sT0}, s{sQB}, 7")
    e(f"s_add_u32 s{sXO}, s{sXO}, s{sT0}")
    e(f"s_and_b32 s{sT0}, s{sJ}, 1")
    e(f"s_lshl_b32 s{sT0}, s{sT0}, 6")
    e(f"s_add_u32 s{sXO}, s{sXO}, s{sT0}")
    vXA, vOA = 5, 7
    e(f"v_and_b32 v{vXA}, 31, v{vL}")
    e(f"v_lshlrev_b32 v{vXA}, 10, v{vXA}")
    e(f"v_lshrrev_b32 v{vOA}, 5, v{vL}")
    e(f"v_lshl_add_u32 v{vXA}, v{vOA}, 3, v{vXA}")
    e(f"v_lshl_add_u32 v{vOA}, v{vOA}, 3, v{vXA}")
    for q in range(4):
        e(f"buffer_load_dwordx2 {vr(XR + 2*q, 2)}, v{vXA}, s[{rA}:{rA+3}], s{sXO} offen offset:{16*q}")
    vWR, vRD = 2, 3
    e(f"s_lshl_b32 s{sT0}, s{sJ}, 12")
    e(f"v_add_u32 v{vWR}, s{sT0}, v{vL16}")
    e(f"s_lshl_b32 s{sT0}, s{sJ}, 14")
    e(f"v_add_u32 v{vRD}, s{sT0}, v{vL16}")
    e("s_barrier")
    for t in range(4):
        for q in range(4):
            e(f"ds_write_b128 v{vWR}, {vr(ACC + 16*t + 4*q, 4)} offset:{t*16384 + q*1024}")
    e("s_waitcnt lgkmcnt(0)")
    e("s_barrier")
    for s in range(4):
        for q in range(4):
            e(f"ds_read_b128 {vr(ACC + 16*s + 4*q, 4)}, v{vRD} offset:{s*4096 + q*1024}")
    e(f"s_mov_b32 s{sT0}, {hex(f2u(-LOG2E))}")
    e("s_waitcnt lgkmcnt(8)")
    for i in range(16):
        e(f"v_add_f32 v{ACC+i}, v{ACC+i}, v{ACC+16+i}")
    e("s_waitcnt lgkmcnt(0)")
    for i in range(16):
        e(f"v_add_f32 v{ACC+32+i}, v{ACC+32+i}, v{ACC+48+i}")
    for i in range(16):
        e(f"v_add_f32 v{ACC+i}, v{ACC+i}, v{ACC+32+i}")
    for i in range(16):
        e(f"v_mul_f32 v{G+i}, s{sT0}, v{ACC+i}")
    for i in range(16):
        e(f"v_exp_f32 v{G+i}, v{G+i}")
    for i in range(16):
        e(f"v_add_f32 v{G+i}, 1.0, v{G+i}")
    for i in range(16):
        e(f"v_rcp_f32 v{G+i}, v{G+i}")
    for i in range(16):
        e(f"v_mul_f32 v{G+i}, v{G+i}, v{ACC+i}")
    sOO, sFO = sSO1, sHO
    e(f"s_and_b32 s{sT0}, s{sJ}, 1")
    e(f"s_lshl_b32 s{sT0}, s{sT0}, 4")
    e(f"s_lshl_b32 s{sOO}, s{sRTL}, 5")
    e(f"s_add_u32 s{sOO}, s{sOO}, s{sT0}")
    e(f"s_lshl_b32 s{sOO}, s{sOO}, 10")
    e(f"s_add_u32 s{sOO}, s{sOO}, {OOFF}")
    e(f"s_lshl_b32 s{sFO}, s{sHD}, 5")
    e(f"s_add_u32 s{sFO}, s{sFO}, s{sT0}")
    e(f"s_lshl_b32 s{sFO}, s{sFO}, 2")
    e(f"s_add_u32 s{sFO}, s{sFO}, {FO}")
    vFA, vFV = 4, 6
    e(f"v_and_b32 v{vFA}, 15, v{vL}")
    e(f"v_lshlrev_b32 v{vFA}, 2, v{vFA}")
    e(f"s_xor_b32 s{sT0}, s{sJ}, 1")
    e(f"s_lshl_b32 s{sT0}, s{sT0}, 12")
    e(f"v_add_u32 v{vRD}, s{sT0}, v{vL16}")
    e("s_waitcnt vmcnt(0)")
    e("s_setprio 3")
    e("s_barrier")
    st(e, 7)
    poll(e, "L_poll_o", [f"buffer_load_dword v{vFV}, v{vFA}, s[{rWS}:{rWS+3}], s{sFO} offen sc1"],
         [f"v_cmp_ne_u32 vcc, 1, v{vFV}"])
    st(e, 8)
    for ks in range(16):
        e(f"buffer_load_dwordx4 {vr(ACC + 4*ks, 4)}, v{vL16}, s[{rWS}:{rWS+3}], s{sOO} offen offset:{(ks % 4)*1024} sc1")
        if ks % 4 == 3 and ks < 15:
            e(f"s_add_u32 s{sOO}, s{sOO}, 4096")
    SA, SB = 16, 32
    for ks in range(16):
        e(f"s_waitcnt vmcnt({15 - ks})")
        for acc, n in ((SB, 1), (SA, 0)):
            c = "0" if ks == 0 else vr(acc, 16)
            e(f"v_mfma_f32_32x32x16_bf16 {vr(acc, 16)}, {vr(WO + 8*ks + 4*n, 4)}, {vr(ACC + 4*ks, 4)}, {c}")
    for q in range(4):
        e(f"ds_write_b128 v{vWR}, {vr(SB + 4*q, 4)} offset:{q*1024}")
    e("s_waitcnt lgkmcnt(0)")
    e("s_barrier")
    for q in range(4):
        e(f"ds_read_b128 {vr(SB + 4*q, 4)}, v{vRD} offset:{q*1024}")
    e(f"s_mov_b32 s{sT0}, 0xffff0000")
    T = ACC
    for i in range(8):
        e(f"v_lshlrev_b32 v{T+2*i}, 16, v{XR+i}")
        e(f"v_and_b32 v{T+2*i+1}, s{sT0}, v{XR+i}")
    for q in range(4):
        e(f"s_waitcnt lgkmcnt({3 - q})")
        for i in range(4 * q, 4 * q + 4):
            e(f"v_add_f32 v{SA+i}, v{SA+i}, v{SB+i}")
        for i in range(4 * q, 4 * q + 4):
            e(f"v_fma_f32 v{T+i}, v{SA+i}, v{G+i}, v{T+i}")
        for i in range(2):
            e(f"v_cvt_pk_bf16_f32 v{XR+2*q+i}, v{T+4*q+2*i}, v{T+4*q+2*i+1}")
        if q % 2 == 1:
            b = XR + 2 * (q - 1)
            e(f"v_permlane32_swap_b32 v{b}, v{b+2}")
            e(f"v_permlane32_swap_b32 v{b+1}, v{b+3}")
            e(f"buffer_store_dwordx4 {vr(b, 4)}, v{vOA}, s[{rB}:{rB+3}], s{sXO} offen offset:{16*(q-1)}")
    if o.stamps:
        e("s_waitcnt vmcnt(0)")
    st.flush(e, 9, vt=2)
    e("L_exit:")
    e("s_endpgm")


HEADER = f"""; Fused LayerNorm + QKV + full softmax attention + SwiGLU FFN + gated output, one persistent launch.
; @launch grid=(256,1,1) block=(512,1,1) lds={LDS_BYTES}
.amdgcn_target "amdgcn-amd-amdhsa--gfx950"
.text
.globl {NAME}_kernel
.p2align 8
.type {NAME}_kernel,@function
{NAME}_kernel:
"""
FOOTER = f"""
L_code_end:
.section .rodata,"a"
.p2align 6
.amdhsa_kernel {NAME}_kernel
  .amdhsa_next_free_vgpr 256
  .amdhsa_next_free_sgpr 102
  .amdhsa_accum_offset 256
  .amdhsa_group_segment_fixed_size 0
  .amdhsa_kernarg_size 80
  .amdhsa_user_sgpr_count 2
  .amdhsa_user_sgpr_kernarg_segment_ptr 1
  .amdhsa_system_sgpr_workgroup_id_x 1
.end_amdhsa_kernel
"""


def generate(o):
    e = Emit()
    st = Stamper(o.stamps)
    prologue(e, o, st)
    c_phaseA(e, o, st)
    c_attention(e, o, st)
    vm = h_phaseA(e, o, st)
    h_phaseB(e, o, st, vm)
    n0 = len(e.seq)
    e.seq = pad(e.seq)
    return HEADER + e.text() + FOOTER, len(e.seq) - n0


if __name__ == "__main__":
    o = Opt()
    out = sys.argv[1]
    for a in sys.argv[2:]:
        k, v = a.split("=")
        assert hasattr(o, k), k
        setattr(o, k, type(getattr(o, k))(int(v)) if not isinstance(getattr(o, k), float) else float(v))
    txt, nn = generate(o)
    open(out, "w").write(txt)
    print("wrote", out, "nops inserted:", nn)
```
